```python
import torch

def _softmax(x, axis=-1):
    return torch.softmax(x, dim=axis)
def _gelu(x):
    return torch.nn.functional.gelu(x, approximate="tanh")
def _silu(x):
    return torch.nn.functional.silu(x)
def _sigmoid(x):
    return torch.sigmoid(x)
def _layernorm(x, axis=-1, eps=1e-5):
    m = x.mean(dim=axis, keepdim=True)
    v = x.var(dim=axis, keepdim=True, unbiased=False)
    return (x - m) / torch.sqrt(v + eps)
def _scatter_add(tgt, idx, src, axis=0):
    return tgt.clone().index_add_(axis, idx, src)
def _segment_sum(src, seg, n):
    out = torch.zeros((n,) + src.shape[1:], dtype=src.dtype)
    return out.index_add_(0, seg, src)
def _pad(x, pw):
    flat = tuple(v for pair in reversed(pw) for v in pair)
    return torch.nn.functional.pad(x, flat)

kernel_name = 'recurrent_scan__ssm_conv_s5__mixer_token_mlp__prompt'

def setup_inputs():

    _w = (lambda a: (lambda t: t.to(torch.bfloat16) if t.is_floating_point() else t)(torch.as_tensor(a)))
    def _A_setup():
        B, S, D = 1, 2048, 512
        P = D
        Lambda_re = -0.5 * (lambda _x: torch.exp(torch.as_tensor(_x)))((lambda *s: torch.randn(*s, dtype=torch.bfloat16) * 0.4)(P))
        Lambda_im = (lambda *s: torch.randn(*s, dtype=torch.bfloat16) * 0.8)(P) * 1.0
        B_re = (lambda *s: torch.randn(*s, dtype=torch.bfloat16) * 0.4)(P, D) * (D ** -0.5)
        B_im = (lambda *s: torch.randn(*s, dtype=torch.bfloat16) * 0.4)(P, D) * (D ** -0.5)
        C_re = (lambda *s: torch.randn(*s, dtype=torch.bfloat16) * 0.4)(D, P) * (P ** -0.5)
        C_im = (lambda *s: torch.randn(*s, dtype=torch.bfloat16) * 0.4)(D, P) * (P ** -0.5)
        log_dt = (lambda *s: torch.randn(*s, dtype=torch.bfloat16) * 0.4)(P) * 0.3 - 2.0
        Dskip = (lambda *s: torch.randn(*s, dtype=torch.bfloat16) * 0.2)(D)
        return {
            "x": _w((lambda *s: torch.randn(*s, dtype=torch.bfloat16) * 0.05)(B, S, D)),
            "Lambda_re": _w(Lambda_re),
            "Lambda_im": _w(Lambda_im),
            "B_re": _w(B_re),
            "B_im": _w(B_im),
            "C_re": _w(C_re),
            "C_im": _w(C_im),
            "log_dt": _w(log_dt),
            "Dskip": _w(Dskip),
        }
    _A_in = _A_setup()

    def _B_setup():
        B, S, D, F = 1, 2048, 512, 1376
        return {
            "x": _w((lambda *s: torch.randn(*s, dtype=torch.bfloat16) * 0.05)(B, S, D)),
            "w1": _w((lambda *s: torch.randn(*s, dtype=torch.bfloat16) * 0.4)(S, F) * (S ** -0.5)),
            "b1": _w((lambda *s: torch.randn(*s, dtype=torch.bfloat16) * 3.2)(F) * 0.02),
            "w2": _w((lambda *s: torch.randn(*s, dtype=torch.bfloat16) * 0.8)(F, S) * (F ** -0.5)),
            "b2": _w((lambda *s: torch.randn(*s, dtype=torch.bfloat16) * 1.6)(S) * 0.02),
        }
    _B_in = _B_setup()

    return {
        "A_x": _A_in["x"],
        "A_Lambda_re": _A_in["Lambda_re"],
        "A_Lambda_im": _A_in["Lambda_im"],
        "A_B_re": _A_in["B_re"],
        "A_B_im": _A_in["B_im"],
        "A_C_re": _A_in["C_re"],
        "A_C_im": _A_in["C_im"],
        "A_log_dt": _A_in["log_dt"],
        "A_Dskip": _A_in["Dskip"],
        "B_x": _B_in["x"],
        "B_w1": _B_in["w1"],
        "B_b1": _B_in["b1"],
        "B_w2": _B_in["w2"],
        "B_b2": _B_in["b2"],
    }

def reference(A_x, A_Lambda_re, A_Lambda_im, A_B_re, A_B_im, A_C_re, A_C_im, A_log_dt, A_Dskip, B_x, B_w1, B_b1, B_w2, B_b2):
    def _A_ref(x, Lambda_re, Lambda_im, B_re, B_im, C_re, C_im, log_dt, Dskip):
        Bsz, L, H = x.shape
        Lam = Lambda_re + 1j * Lambda_im
        Bmat = B_re + 1j * B_im
        Cmat = C_re + 1j * C_im
        dt = torch.exp(log_dt)
        Lam_bar = torch.exp(dt * Lam)
        B_bar = ((Lam_bar - 1.0) / Lam)[:, None] * Bmat
        Bu = torch.einsum("bld,pd->blp", x + 0j, B_bar)
        h = torch.zeros_like(Bu[:, 0, :])
        hs = []
        for t in range(L):
            h = Lam_bar[None, :] * h + Bu[:, t, :]
            hs.append(h)
        hseq = torch.stack(hs, 1)
        y = 2.0 * torch.einsum("blp,dp->bld", hseq, Cmat).real + x * Dskip[None, None, :]
        return y

    def _B_ref(x, w1, b1, w2, b2):
        B, S, D = x.shape
        h = _layernorm(x, axis=-1)
        u = torch.einsum("bsd,sf->bdf", h, w1) + b1
        u = _gelu(u)
        y = torch.einsum("bdf,fs->bds", u, w2) + b2
        return (lambda x, *d: x.permute(*d))(y, 0, 2, 1)

    x = A_x
    xn = _layernorm(x, axis=-1)
    s = _A_ref(xn, A_Lambda_re, A_Lambda_im, A_B_re, A_B_im, A_C_re, A_C_im, A_log_dt, A_Dskip)
    g = _silu(_B_ref(xn, B_w1, B_b1, B_w2, B_b2))
    return x + s * g
```

```python
NAME = "recurrent_scan__ssm_conv_s5__mixer_token_mlp__prompt"
KA = dict(x=0, lre=8, lim=16, bre=24, bim=32, cre=40, cim=48, ldt=56, dsk=64, bx=72, w1=80, b1=88, w2=96, b2=104, out=112, dbg=120, ws=128)
MB = 1 << 20
WS_HN = 0
WS_XD = 2 * MB
WS_HT = 4 * MB
WS_UT = 8 * MB
WS_Y = 10 * MB
WS_E = 14 * MB
WS_STAMP = 15 * MB

class Asm:
    def __init__(self):
        self.l = []
        self.n = 0
    def __call__(self, s):
        for line in s.strip("\n").split("\n"):
            self.l.append("    " + line.strip())
    def label(self, name):
        self.l.append(name + ":")
    def raw(self, s):
        self.l.append(s)
    def uniq(self, p="L"):
        self.n += 1
        return f"{p}_{self.n}"
    def text(self):
        return "\n".join(self.l) + "\n"

def srd(a, d, lo_hi, size, add=0):
    if add:
        a(f"s_add_u32 s{d}, s{lo_hi}, {add}")
        a(f"s_addc_u32 s{d+1}, s{lo_hi+1}, 0")
    else:
        a(f"s_mov_b32 s{d}, s{lo_hi}")
        a(f"s_mov_b32 s{d+1}, s{lo_hi+1}")
    a(f"s_mov_b32 s{d+2}, {size}")
    a(f"s_mov_b32 s{d+3}, 0x00020000")

def kernel_head(a, name):
    a.raw(f".globl {name}")
    a.raw(".p2align 8")
    a.raw(f".type {name},@function")
    a.label(name)

def kernel_desc(a, name, vgpr, sgpr=102):
    acc = (vgpr + 3) // 4 * 4
    a.raw(".p2align 6")
    a.raw(f".amdhsa_kernel {name}")
    a.raw(f"  .amdhsa_next_free_vgpr {vgpr}")
    a.raw(f"  .amdhsa_next_free_sgpr {sgpr}")
    a.raw(f"  .amdhsa_accum_offset {acc}")
    a.raw("  .amdhsa_group_segment_fixed_size 0")
    a.raw("  .amdhsa_kernarg_size 136")
    a.raw("  .amdhsa_user_sgpr_count 2")
    a.raw("  .amdhsa_user_sgpr_kernarg_segment_ptr 1")
    a.raw("  .amdhsa_system_sgpr_workgroup_id_x 1")
    a.raw("  .amdhsa_float_denorm_mode_32 3")
    a.raw(".end_amdhsa_kernel")

def f2u(x):
    import struct
    return "0x%08x" % struct.unpack("<I", struct.pack("<f", x))[0]
```

```python
from gen_common import *
import gen_kk
from gen_kk import stamp, round_bf16_pair
import math

SL1 = 24576; D1 = 6
L_STAT = 0
L_SEG  = L_STAT + 1024
L_SB   = L_SEG + 3840
L_HIN  = L_SB + 2048
RB1 = 8192
K1_LDS = RB1 + D1*SL1

def allreduce(a, regs, tmp):
    n = len(regs)
    pad = max(0, 2 - (n - 1))
    for mod in ["quad_perm:[1,0,3,2]", "quad_perm:[2,3,0,1]", "row_half_mirror", "row_mirror"]:
        if pad: a(f"s_nop {pad-1}")
        for r in regs:
            a(f"v_add_f32_dpp v{r}, v{r}, v{r} {mod} row_mask:0xf bank_mask:0xf")
    for op in ["v_permlane16_swap_b32", "v_permlane32_swap_b32"]:
        for r, t in zip(regs, tmp): a(f"v_mov_b32 v{t}, v{r}")
        a("s_nop 1")
        for r, t in zip(regs, tmp): a(f"{op} v{r}, v{t}")
        a("s_nop 1")
        for r, t in zip(regs, tmp): a(f"v_add_f32 v{r}, v{r}, v{t}")

def rbf(a, x, t=None):
    a(f"v_cvt_pk_bf16_f32 v{x}, v{x}, v{x}")
    a(f"v_lshlrev_b32 v{x}, 16, v{x}")

def stats(a, s1, s2, m, r, eps_s):
    a(f"v_mul_f32 v{s1}, {f2u(1/512)}, v{s1}")
    a(f"v_mul_f32 v{s2}, {f2u(1/512)}, v{s2}")
    a(f"v_fma_f32 v{s2}, -v{s1}, v{s1}, v{s2}")
    a(f"v_max_f32 v{s2}, 0, v{s2}")
    a(f"v_cvt_pk_bf16_f32 v{m}, v{s1}, v{s2}")
    a(f"v_and_b32 v{s2}, 0xffff0000, v{m}")
    a(f"v_lshlrev_b32 v{m}, 16, v{m}")
    a(f"v_add_f32 v{s2}, {eps_s}, v{s2}")
    rbf(a, s2)
    a(f"v_sqrt_f32 v{s2}, v{s2}")
    a("s_nop 0")
    rbf(a, s2)
    a(f"v_rcp_f32 v{r}, v{s2}")
    a("s_nop 0")

def cexp(a, dre, dim, zre, zim, n, t):
    a(f"v_mul_f32 v{dre}, {n}, v{zre}")
    a(f"v_mul_f32 v{t}, {n}, v{zim}")
    a(f"v_exp_f32 v{dre}, v{dre}")
    a(f"v_fract_f32 v{t}, v{t}")
    a(f"v_sin_f32 v{dim}, v{t}")
    a(f"v_cos_f32 v{t}, v{t}")
    a("s_nop 0")
    a(f"v_mul_f32 v{dim}, v{dim}, v{dre}")
    a(f"v_mul_f32 v{dre}, v{t}, v{dre}")

def cmac(a, dre, dim, lre, lim, hre, him, cre, cim):
    a(f"v_fma_f32 v{dre}, v{lre}, v{hre}, v{cre}")
    a(f"v_fma_f32 v{dim}, v{lre}, v{him}, v{cim}")
    a(f"v_fma_f32 v{dre}, -v{lim}, v{him}, v{dre}")
    a(f"v_fma_f32 v{dim}, v{lim}, v{hre}, v{dim}")

def lam_params(a, base, voff):
    a(f"buffer_load_ushort v{base}, v{voff}, s[56:59], 0 offen")
    a(f"buffer_load_ushort v{base+1}, v{voff}, s[60:63], 0 offen")
    a(f"buffer_load_ushort v{base+2}, v{voff}, s[64:67], 0 offen")

def lam_params2(a, base):
    a(f"v_lshlrev_b32 v{base}, 16, v{base}")
    a(f"v_lshlrev_b32 v{base+1}, 16, v{base+1}")
    a(f"v_lshlrev_b32 v{base+2}, 16, v{base+2}")
    a(f"v_mul_f32 v{base+2}, {f2u(math.log2(math.e))}, v{base+2}")
    a(f"v_exp_f32 v{base+2}, v{base+2}")
    a("s_nop 0")
    rbf(a, base+2)
    a(f"v_mul_f32 v{base+3}, v{base+2}, v{base+1}")
    a(f"v_mul_f32 v{base+2}, v{base+2}, v{base}")
    a(f"v_mul_f32 v{base+3}, {f2u(1/(2*math.pi))}, v{base+3}")
    a(f"v_mul_f32 v{base+2}, {f2u(math.log2(math.e))}, v{base+2}")

def gen_k1(a, name):
    kernel_head(a, name)
    a(f"""s_cmp_ge_u32 s2, 256
    s_cbranch_scc1 k1_end
    s_load_dwordx4 s[68:71], s[0:1], 0       ; x, lre
    s_load_dwordx4 s[72:75], s[0:1], 16
    s_load_dwordx2 s[76:77], s[0:1], 32      ; bim
    s_load_dwordx4 s[80:83], s[0:1], 56
    s_load_dwordx4 s[84:87], s[0:1], 120
    v_lshrrev_b32 v2, 6, v0
    v_and_b32 v1, 63, v0
    v_readfirstlane_b32 s3, v2
    s_and_b32 s20, s2, 7
    s_lshr_b32 s21, s2, 3
    s_lshr_b32 s12, s20, 1
    s_lshl_b32 s12, s12, 2
    s_and_b32 s22, s21, 3
    s_add_u32 s12, s12, s22          ; chunk c
    s_and_b32 s13, s20, 1
    s_lshl_b32 s13, s13, 3
    s_lshr_b32 s22, s21, 2
    s_add_u32 s13, s13, s22          ; group g
    s_waitcnt lgkmcnt(0)
    s_mov_b32 s16, s86
    s_mov_b32 s17, s87""")
    srd(a, 56, 70, 1024); srd(a, 60, 72, 1024); srd(a, 64, 80, 1024)
    a("""v_and_b32 v3, 31, v1
    s_lshl_b32 s22, s13, 6
    v_lshl_add_u32 v4, v3, 1, s22""")
    a("s_cmp_ge_u32 s3, 4")
    a("s_cbranch_scc1 k1_loader")
    stamp(a, 0)
    P = 200
    lam_params(a, P, 4)
    a(f"""v_bfe_u32 v5, v1, 2, 1
    v_lshlrev_b32 v5, 4, v5
    v_bfe_u32 v6, v1, 3, 2
    v_lshl_add_u32 v5, v6, 2, v5
    v_and_b32 v6, 3, v1
    v_add_u32 v5, v5, v6                ; t
    v_lshrrev_b32 v7, 5, v1             ; h
    s_lshl_b32 s20, s3, 1
    v_or_b32 v8, s20, v7
    v_bfe_u32 v9, v5, 1, 3
    v_xor_b32 v9, v9, v8
    v_bfe_u32 v10, v3, 1, 3
    v_xor_b32 v10, v10, v8
    s_lshl_b32 s21, s3, 12
    v_lshl_add_u32 v11, v5, 7, s21      ; A row*128
    v_lshlrev_b32 v12, 7, v3
    v_add_u32 v12, 16384, v12           ; B row*128""")
    for ks in range(4):
        a(f"v_xor_b32 v13, {2*ks}, v9")
        a(f"v_lshl_add_u32 v{180+ks}, v13, 4, v11")
        a(f"v_xor_b32 v13, {2*ks}, v10")
        a(f"v_lshl_add_u32 v{184+ks}, v13, 4, v12")
    for r in list(range(14, 48)) + list(range(96, 144)) + [196, 197]:
        a(f"v_mov_b32 v{r}, 0")
    a("v_mov_b32 v198, 0x3f803f80")
    a(f"""v_lshlrev_b32 v13, 3, v0
    v_cmp_gt_u32 vcc, 1792, v13
    s_nop 1
    v_cndmask_b32 v13, 0, v13, vcc
    ds_write_b64 v13, v[14:15] offset:{L_SEG}""")
    a("s_waitcnt vmcnt(0)")
    lam_params2(a, P)
    LAM, L16, LS, CF = P+4, P+6, P+8, P+10
    cexp(a, LAM, LAM+1, P+2, P+3, "1.0", 13)
    cexp(a, L16, L16+1, P+2, P+3, f2u(16.0), 13)
    a("v_cvt_f32_u32 v199, v8")
    a(f"v_mul_f32 v199, {f2u(16.0)}, v199")
    cexp(a, LS, LS+1, P+2, P+3, "v199", 13)
    a(f"""v_add_f32 v13, -1.0, v{LAM}
    v_mul_f32 v199, v{P}, v{P}
    v_fma_f32 v199, v{P+1}, v{P+1}, v199
    v_rcp_f32 v199, v199
    v_mul_f32 v{CF}, v13, v{P}
    v_fma_f32 v{CF}, v{LAM+1}, v{P+1}, v{CF}
    v_mul_f32 v{CF+1}, v{LAM+1}, v{P}
    v_fma_f32 v{CF+1}, -v13, v{P+1}, v{CF+1}
    v_add_f32 v199, v199, v199
    v_mul_f32 v{CF}, v{CF}, v199
    v_mul_f32 v{CF+1}, v{CF+1}, v199""")
    a(f"s_mov_b32 s10, {RB1}")
    a("s_mov_b32 s11, 4")
    def compute(prv, ks):
        pa = prv + 12*ks
        a(f"v_mfma_f32_32x32x16_bf16 v[16:31], v[{pa}:{pa+3}], v[{pa+4}:{pa+7}], v[16:31]")
        for j in range(4):
            a(f"v_dot2c_f32_bf16 v14, v{pa+j}, v198")
            a(f"v_dot2c_f32_bf16 v15, v{pa+j}, v{pa+j}")
        a(f"v_mfma_f32_32x32x16_bf16 v[32:47], v[{pa}:{pa+3}], v[{pa+8}:{pa+11}], v[32:47]")
        if ks == 0:
            for j in range(4):
                a(f"v_dot2c_f32_bf16 v196, v{pa+4+j}, v198")
                a(f"v_dot2c_f32_bf16 v197, v{pa+8+j}, v198")
    a.label("k1_cloop")
    for par in range(2):
        cur = 48 + 48*par; prv = 48 + 48*(1-par)
        for j in range(8):
            a(f"v_add_u32 v{188+j}, s10, v{180+j}")
        a(f"s_add_u32 s10, s10, {SL1}")
        a(f"s_cmp_ge_u32 s10, {RB1+D1*SL1}")
        a(f"s_cselect_b32 s10, {RB1}, s10")
        a("s_barrier")
        for ks in range(4):
            ra = cur + 12*ks
            a(f"ds_read_b128 v[{ra}:{ra+3}], v{188+ks}")
            a(f"ds_read_b128 v[{ra+4}:{ra+7}], v{192+ks}")
            a(f"ds_read_b128 v[{ra+8}:{ra+11}], v{192+ks} offset:4096")
            compute(prv, ks)
        a("s_waitcnt lgkmcnt(0)")
    a("s_sub_u32 s11, s11, 1\ns_cmp_lg_u32 s11, 0\ns_cbranch_scc1 k1_cloop")
    for ks in range(4): compute(96, ks)
    stamp(a, 1)
    a(f"""v_lshlrev_b32 v13, 3, v0
    s_nop 1
    ds_write_b64 v13, v[196:197] offset:{L_SB}
    v_mov_b32 v48, v14
    v_mov_b32 v49, v15
    s_nop 1
    v_permlane32_swap_b32 v14, v48
    v_permlane32_swap_b32 v15, v49
    s_nop 1
    v_add_f32 v14, v14, v48
    v_add_f32 v15, v15, v49""")
    stats(a, 14, 15, 50, 51, f2u(1e-5))
    a(f"""s_lshl_b32 s20, s3, 8
    v_lshl_add_u32 v13, v5, 3, s20
    ds_write_b64 v13, v[50:51] offset:{L_STAT}
    v_lshl_add_u32 v13, v7, 7, s20
    s_waitcnt lgkmcnt(0)
    s_barrier""")
    for j in range(8):
        a(f"ds_read_b128 v[{64+4*j}:{67+4*j}], v13 offset:{L_STAT+16*j}")
    a("v_lshlrev_b32 v13, 3, v3")
    for j in range(8):
        a(f"ds_read_b64 v[{96+2*j}:{97+2*j}], v13 offset:{L_SB+256*j}")
    a("s_waitcnt lgkmcnt(0)")
    for j in range(1, 8):
        a(f"v_add_f32 v96, v96, v{96+2*j}")
        a(f"v_add_f32 v97, v97, v{97+2*j}")
    a("v_mov_b32 v52, 0\nv_mov_b32 v53, 0")
    e = [52, 54]
    for r in range(16):
        m = 64 + 2*r; rr = m + 1
        a(f"v_fma_f32 v{16+r}, -v{m}, v96, v{16+r}")
        a(f"v_fma_f32 v{32+r}, -v{m}, v97, v{32+r}")
        a(f"v_mul_f32 v{16+r}, v{16+r}, v{rr}")
        a(f"v_mul_f32 v{32+r}, v{32+r}, v{rr}")
        s, d = e[r & 1], e[1 - (r & 1)]
        cmac(a, d, d+1, LAM, LAM+1, s, s+1, 16+r, 32+r)
    a(f"""v_lshlrev_b32 v13, 3, v0
    ds_write_b64 v13, v[52:53] offset:{L_SEG+7*256}
    s_waitcnt lgkmcnt(0)
    s_barrier""")
    for j in range(7):
        a(f"ds_read_b64 v[{64+2*j}:{65+2*j}], v13 offset:{L_SEG+256*j}")
    for r in range(16):
        a(f"v_mul_f32 v56, v{CF}, v{16+r}")
        a(f"v_mul_f32 v57, v{CF}, v{32+r}")
        a(f"v_fma_f32 v56, -v{CF+1}, v{32+r}, v56")
        a(f"v_fma_f32 v{32+r}, v{CF+1}, v{16+r}, v57")
        a(f"v_mov_b32 v{16+r}, v56")
    a("s_waitcnt lgkmcnt(0)")
    cur = 64
    for j in range(1, 7):
        d = e[j & 1]
        cmac(a, d, d+1, L16, L16+1, cur, cur+1, 64+2*j, 65+2*j)
        cur = d
    srd(a, 24, 16, 4*MB, WS_HT)
    a(f"""s_lshl_b32 s20, s12, 8
    v_lshlrev_b32 v13, 11, v4
    v_lshl_add_u32 v13, v8, 5, v13
    v_add_u32 v13, s20, v13
    v_add_u32 v12, {2*MB}, v13
    v_lshlrev_b32 v11, 3, v3""")
    stamp(a, 2)
    a("s_barrier")
    stamp(a, 3)
    a(f"ds_read_b64 v[58:59], v11 offset:{L_HIN}")
    a("s_waitcnt lgkmcnt(0)")
    cmac(a, 54, 55, LS, LS+1, 58, 59, 52, 53)
    a(f"""v_mul_f32 v52, v{CF}, v54
    v_mul_f32 v53, v{CF}, v55
    v_fma_f32 v52, -v{CF+1}, v55, v52
    v_fma_f32 v53, v{CF+1}, v54, v53""")
    for r in range(16):
        hre, him = (52, 53) if r == 0 else (16+r-1, 32+r-1)
        a(f"v_fma_f32 v{16+r}, v{LAM}, v{hre}, v{16+r}")
        a(f"v_fma_f32 v{32+r}, v{LAM}, v{him}, v{32+r}")
        a(f"v_fma_f32 v{16+r}, -v{LAM+1}, v{him}, v{16+r}")
        a(f"v_fma_f32 v{32+r}, v{LAM+1}, v{hre}, v{32+r}")
        if r & 1:
            a(f"v_cvt_pk_bf16_f32 v{64+r//2}, v{16+r-1}, v{16+r}")
            a(f"v_cvt_pk_bf16_f32 v{72+r//2}, -v{32+r-1}, -v{32+r}")
        if r == 7:
            a("buffer_store_dwordx4 v[64:67], v13, s[24:27], 0 offen")
            a("buffer_store_dwordx4 v[72:75], v12, s[24:27], 0 offen")
    a("buffer_store_dwordx4 v[68:71], v13, s[24:27], 0 offen offset:16")
    a("buffer_store_dwordx4 v[76:79], v12, s[24:27], 0 offen offset:16")
    if gen_kk.STAMPS: a("s_waitcnt vmcnt(0)")
    stamp(a, 4)
    a("s_endpgm")
    a.label("k1_loader")
    a("s_sub_u32 s3, s3, 4")
    srd(a, 4, 68, 2*MB)
    srd(a, 28, 82, 1024)
    a("""s_cmp_ge_u32 s3, 2
    s_cselect_b32 s32, s76, s74
    s_cselect_b32 s33, s77, s75
    s_mov_b32 s34, 524288
    s_mov_b32 s35, 0x00020000""")
    a("""s_lshl_b32 s20, s12, 7
    s_lshl_b32 s21, s13, 3
    s_add_u32 s20, s20, s21
    s_lshl_b32 s21, s3, 1
    s_add_u32 s20, s20, s21
    s_lshl_b32 s36, s20, 10
    v_lshlrev_b32 v20, 4, v1
    buffer_load_dwordx4 v[24:27], v20, s[4:7], s36 offen
    buffer_load_dwordx4 v[28:31], v20, s[4:7], s36 offen offset:1024
    buffer_load_dwordx4 v[32:35], v20, s[28:31], 0 offen""")
    lam_params(a, 100, 4)
    a("""v_lshrrev_b32 v6, 3, v1            ; row8
    v_lshrrev_b32 v7, 4, v1            ; row8>>1
    v_and_b32 v8, 7, v1
    v_xor_b32 v7, v7, v8               ; chunk j even
    v_xor_b32 v8, 4, v7                ; chunk j odd
    v_lshlrev_b32 v6, 10, v6
    v_lshl_add_u32 v7, v7, 4, v6
    v_lshl_add_u32 v8, v8, 4, v6
    v_add_u32 v8, 7168, v8             ; +8 rows - 1024
    s_lshl_b32 s20, s12, 17
    s_lshl_b32 s21, s3, 15
    s_add_u32 s20, s20, s21            ; x row base bytes
    v_add_u32 v10, s20, v7
    v_add_u32 v11, s20, v8
    v_add_u32 v12, 14336, v10
    v_add_u32 v13, 14336, v11
    s_lshl_b32 s20, s13, 15
    s_and_b32 s21, s3, 1
    s_lshl_b32 s21, s21, 14
    s_add_u32 s20, s20, s21            ; B row base bytes
    v_add_u32 v14, s20, v7
    v_add_u32 v15, s20, v8
    s_lshl_b32 s10, s3, 12             ; lds x part
    s_lshl_b32 s21, s3, 11
    s_sub_u32 s37, 16384, s21          ; delta to B part: 16384 + lw*2048 - lw*4096
    s_add_u32 s10, s10, %d
    s_mov_b32 s14, s10
    s_mov_b32 s8, 0""" % RB1)
    a(f"s_add_u32 s15, s10, {D1*SL1}")
    def issue():
        a(f"""s_mov_b32 m0, s10
        s_add_u32 s38, s10, s37
        buffer_load_dwordx4 v10, s[4:7], s8 offen lds
        buffer_load_dwordx4 v11, s[4:7], s8 offen offset:1024 lds
        s_add_u32 s10, s10, {SL1}
        buffer_load_dwordx4 v12, s[4:7], s8 offen offset:2048 lds
        s_cmp_ge_u32 s10, s15
        buffer_load_dwordx4 v13, s[4:7], s8 offen offset:3072 lds
        s_mov_b32 m0, s38
        s_cselect_b32 s10, s14, s10
        buffer_load_dwordx4 v14, s[32:35], s8 offen lds
        buffer_load_dwordx4 v15, s[32:35], s8 offen offset:1024 lds
        s_add_u32 s8, s8, 128""")
    a(f"s_mov_b32 s11, {D1-1}")
    a.label("k1_lpro"); issue()
    a("s_sub_u32 s11, s11, 1\ns_cmp_lg_u32 s11, 0\ns_cbranch_scc1 k1_lpro")
    a(f"s_mov_b32 s11, {8-(D1-1)}")
    a.label("k1_lloop")
    a(f"s_waitcnt vmcnt({6*(D1-2)})\ns_barrier"); issue()
    a("s_sub_u32 s11, s11, 1\ns_cmp_lg_u32 s11, 0\ns_cbranch_scc1 k1_lloop")
    for t in range(D1-1):
        a(f"s_waitcnt vmcnt({6*(D1-2-t)})\ns_barrier")
    X = [40, 48]
    for rw in range(2):
        for j in range(4):
            a(f"v_lshlrev_b32 v{X[rw]+2*j}, 16, v{24+4*rw+j}")
            a(f"v_and_b32 v{X[rw]+2*j+1}, 0xffff0000, v{24+4*rw+j}")
    for j in range(4):
        a(f"v_lshlrev_b32 v{56+2*j}, 16, v{32+j}")
        a(f"v_and_b32 v{57+2*j}, 0xffff0000, v{32+j}")
    srd(a, 24, 16, 4*MB, WS_HN)
    for ps in range(2):
        for rw in range(2):
            a(f"v_add_f32 v{64+2*rw}, v{X[rw]}, v{X[rw]+1}")
            a(f"v_mul_f32 v{65+2*rw}, v{X[rw]}, v{X[rw]}")
        for j in range(1, 8):
            for rw in range(2):
                if j >= 2: a(f"v_add_f32 v{64+2*rw}, v{64+2*rw}, v{X[rw]+j}")
                a(f"v_fma_f32 v{65+2*rw}, v{X[rw]+j}, v{X[rw]+j}, v{65+2*rw}")
        allreduce(a, [64, 65, 66, 67], [68, 69, 70, 71])
        for rw in range(2):
            stats(a, 64+2*rw, 65+2*rw, 72+2*rw, 73+2*rw, f2u(1e-5))
        for rw in range(2):
            for j in range(8): a(f"v_sub_f32 v{X[rw]+j}, v{X[rw]+j}, v{72+2*rw}")
            for j in range(4): round_bf16_pair(a, X[rw]+2*j, X[rw]+2*j+1, 76)
            for j in range(8): a(f"v_mul_f32 v{X[rw]+j}, v{X[rw]+j}, v{73+2*rw}")
            if ps == 0:
                for j in range(4): round_bf16_pair(a, X[rw]+2*j, X[rw]+2*j+1, 76)
                for j in range(4):
                    a(f"v_mul_f32 v76, v{X[rw]+2*j}, v{56+2*j}")
                    a(f"v_mul_f32 v77, v{X[rw]+2*j+1}, v{57+2*j}")
                    a(f"v_cvt_pk_bf16_f32 v{80+4*rw+j}, v76, v77")
                a(f"s_add_u32 s38, s36, {WS_XD}")
                a(f"buffer_store_dwordx4 v[{80+4*rw}:{83+4*rw}], v20, s[24:27], s38 offen offset:{1024*rw}")
            else:
                for j in range(4): a(f"v_cvt_pk_bf16_f32 v{88+4*rw+j}, v{X[rw]+2*j}, v{X[rw]+2*j+1}")
                a(f"buffer_store_dwordx4 v[{88+4*rw}:{91+4*rw}], v20, s[24:27], s36 offen offset:{1024*rw}")
        if ps == 0:
            a("s_barrier")
    a("s_cmp_lg_u32 s3, 0")
    a("s_cbranch_scc1 k1_end")
    P = 100
    lam_params2(a, P)
    cexp(a, P+4, P+5, P+2, P+3, f2u(16.0), 13)
    cexp(a, P+6, P+7, P+2, P+3, f2u(128.0), 13)
    cexp(a, P+8, P+9, P+2, P+3, f2u(256.0), 13)
    srd(a, 24, 16, 65536, WS_E)
    srd(a, 28, 84, 256)
    a(f"""v_lshlrev_b32 v11, 3, v3           ; p_local*8
    s_lshl_b32 s20, s13, 8
    s_lshl_b32 s21, s12, 12
    s_add_u32 s21, s21, s20
    v_add_u32 v12, s21, v11
    v_lshrrev_b32 v7, 5, v1
    v_lshlrev_b32 v7, 12, v7
    v_sub_u32 v14, v12, v7
    v_subrev_u32 v14, 4096, v14        ; (c-1-half)*4096 + ...
    s_lshl_b32 s20, s13, 4
    s_add_u32 s21, s20, s12
    v_mov_b32 v15, s21
    v_mov_b32 v16, s20
    v_mov_b32 v17, 1""")
    for k in range(1, 8): a(f"v_subrev_u32 v{40+k}, {8192*k}, v14")
    a("""s_lshl_b32 s20, s12, 3             ; bits = 8c (0..120)
    s_mov_b64 s[48:49], -1
    s_mov_b64 s[50:51], 0
    s_lshl_b64 s[52:53], s[48:49], s20
    s_not_b64 s[52:53], s[52:53]
    s_cmp_ge_u32 s12, 8
    s_cselect_b64 s[50:51], s[52:53], 0
    s_cselect_b64 s[48:49], -1, s[52:53]
    s_mov_b32 s20, 0x01010101
    s_and_b32 s48, s48, s20
    s_and_b32 s49, s49, s20
    s_and_b32 s50, s50, s20
    s_and_b32 s51, s51, s20
    s_barrier""")
    for j in range(8):
        a(f"ds_read_b64 v[{64+2*j}:{65+2*j}], v11 offset:{L_SEG+256*(7+j)}")
    a("s_waitcnt lgkmcnt(0)")
    cur = 64; e = [52, 54]
    for j in range(1, 8):
        d = e[j & 1]
        cmac(a, d, d+1, P+4, P+5, cur, cur+1, 64+2*j, 65+2*j)
        cur = d
    a(f"""buffer_store_dwordx2 v[{cur}:{cur+1}], v12, s[24:27], 0 offen sc1
    s_waitcnt vmcnt(0)
    buffer_store_byte v17, v15, s[28:31], 0 offen sc1""")
    a("s_mov_b32 s39, 200000")
    a.label("k1_poll")
    a("""s_sub_u32 s39, s39, 1
    s_cbranch_scc1 k1_pollend
    buffer_load_dwordx4 v[20:23], v16, s[28:31], 0 offen sc1
    s_waitcnt vmcnt(0)
    v_readfirstlane_b32 s20, v20
    v_readfirstlane_b32 s21, v21
    v_readfirstlane_b32 s22, v22
    v_readfirstlane_b32 s23, v23
    s_nop 3
    s_andn2_b64 s[20:21], s[48:49], s[20:21]
    s_andn2_b64 s[22:23], s[50:51], s[22:23]
    s_or_b64 s[20:21], s[20:21], s[22:23]
    s_cbranch_scc1 k1_poll""")
    a.label("k1_pollend")
    a("buffer_load_dwordx2 v[64:65], v14, s[24:27], 0 offen sc1")
    for k in range(1, 8): a(f"buffer_load_dwordx2 v[{64+2*k}:{65+2*k}], v{40+k}, s[24:27], 0 offen sc1")
    a("s_waitcnt vmcnt(0)")
    cur = 78
    for k in range(6, -1, -1):
        d = e[k & 1]
        cmac(a, d, d+1, P+8, P+9, cur, cur+1, 64+2*k, 65+2*k)
        cur = d
    a("""v_mov_b32 v56, v52
    v_mov_b32 v57, v53
    s_nop 1
    v_permlane32_swap_b32 v52, v56
    v_permlane32_swap_b32 v53, v57
    s_nop 1""")
    cmac(a, 58, 59, P+6, P+7, 56, 57, 52, 53)
    a(f"""ds_write_b64 v11, v[58:59] offset:{L_HIN}
    s_waitcnt lgkmcnt(0)
    s_barrier""")
    a.label("k1_end")
    a("s_endpgm")
```

```python
from gen_common import *
import gen_kk
from gen_kk import *
import math
DKK = 9
DA2 = 5
SLA2 = 32768
K2_LDS = max(DKK*16384, DA2*SLA2)
K3_LDS = DKK*16384

def gen_k2(a, name):
    kernel_head(a, name)
    a(f"""s_cmp_ge_u32 s2, 256
    s_cbranch_scc1 k2_end
    s_load_dwordx2 s[16:17], s[0:1], {KA['ws']}
    s_load_dwordx4 s[48:51], s[0:1], {KA['w1']}    ; w1, b1
    s_load_dwordx4 s[52:55], s[0:1], {KA['cre']}
    v_lshrrev_b32 v2, 6, v0
    v_and_b32 v1, 63, v0
    v_readfirstlane_b32 s3, v2
    s_and_b32 s20, s2, 7
    s_lshr_b32 s21, s2, 3
    s_cmp_lt_u32 s20, 2
    s_cbranch_scc1 k2_a2
    s_sub_u32 s20, s20, 2
    s_and_b32 s22, s20, 1        ; dh
    s_lshr_b32 s23, s20, 1       ; ft 0..2
    s_and_b32 s24, s21, 3
    s_lshl_b32 s22, s22, 2
    s_add_u32 s12, s22, s24      ; d tile
    s_lshr_b32 s25, s21, 2       ; fo 0..7
    s_mul_i32 s26, s23, 7
    s_cmp_lg_u32 s23, 0
    s_cselect_b32 s27, 1, 0
    s_add_u32 s26, s26, s27      ; f start 0,8,15
    s_cmp_lg_u32 s23, 0
    s_cselect_b32 s27, 7, 8
    s_cmp_ge_u32 s25, s27
    s_cbranch_scc1 k2_end
    s_add_u32 s13, s26, s25      ; f tile
    s_lshl_b32 s12, s12, 7
    s_lshl_b32 s13, s13, 7
    s_waitcnt lgkmcnt(0)""")
    srd(a, 32, 16, 2*MB, WS_HN)
    srd(a, 36, 48, 2048*2752)
    a("s_cmp_ge_u32 s3, 4")
    a("s_cbranch_scc1 k2_loader")
    stamp(a, 0, kid=1)
    srd(a, 24, 16, 1376*1024, WS_UT)
    srd(a, 28, 50, 1376*2)
    a(f"""s_lshr_b32 s21, s3, 1
    s_and_b32 s20, s3, 1
    v_and_b32 v6, 31, v1
    s_lshl_b32 s21, s21, 6
    s_add_u32 s21, s21, s13
    v_lshl_add_u32 v7, v6, 1, s21      ; f*2
    buffer_load_ushort v100, v7, s[28:31], 0 offen
    v_lshlrev_b32 v101, 9, v7          ; f*1024
    v_lshrrev_b32 v10, 5, v1
    v_lshlrev_b32 v10, 3, v10          ; 4h*2
    s_lshl_b32 s20, s20, 6
    s_add_u32 s20, s20, s12
    v_add3_u32 v101, v101, v10, s20""")
    kk_consumer(a, 32, DKK, "b1")
    stamp(a, 1, kid=1)
    c1 = 2*math.sqrt(2/math.pi)*math.log2(math.e)
    c2 = c1*0.044715
    a(f"""s_mov_b32 s22, {f2u(-c1)}
    s_mov_b32 s23, {f2u(-c2)}
    v_mov_b32 v11, s22
    s_waitcnt vmcnt(0)
    v_lshlrev_b32 v8, 16, v100
    s_nop 7""")
    for q in range(4):
        r = 16 + 4*q
        round_bf16_pair(a, r, r+1, 12); round_bf16_pair(a, r+2, r+3, 13)
        for j in range(4): a(f"v_add_f32 v{r+j}, v{r+j}, v8")
        round_bf16_pair(a, r, r+1, 12); round_bf16_pair(a, r+2, r+3, 13)
        for j in range(4): a(f"v_mul_f32 v{32+j}, v{r+j}, v{r+j}")
        for j in range(4): a(f"v_fma_f32 v{32+j}, v{32+j}, s23, v11")
        for j in range(4): a(f"v_mul_f32 v{32+j}, v{32+j}, v{r+j}")
        for j in range(4): a(f"v_exp_f32 v{32+j}, v{32+j}")
        a("s_nop 0")
        for j in range(4): a(f"v_add_f32 v{32+j}, 1.0, v{32+j}")
        for j in range(4): a(f"v_rcp_f32 v{32+j}, v{32+j}")
        a("s_nop 0")
        for j in range(4): a(f"v_mul_f32 v{32+j}, v{32+j}, v{r+j}")
        a(f"v_cvt_pk_bf16_f32 v{40+2*q}, v32, v33")
        a(f"v_cvt_pk_bf16_f32 v{41+2*q}, v34, v35")
        a(f"buffer_store_dwordx2 v[{40+2*q}:{41+2*q}], v101, s[24:27], 0 offen offset:{16*q}")
    if gen_kk.STAMPS: a("s_waitcnt vmcnt(0)")
    stamp(a, 2, kid=1)
    a("s_endpgm")
    a.label("k2_loader")
    kk_loader_setup(a, 2752)
    kk_loader(a, 32, DKK, "b1")
    a("s_endpgm")
    a.label("k2_a2")
    a("""s_and_b32 s12, s21, 3          ; d tile (128)
    s_lshr_b32 s13, s21, 2
    s_lshl_b32 s20, s20, 3
    s_add_u32 s13, s13, s20        ; chunk c
    s_waitcnt lgkmcnt(0)
    s_cmp_ge_u32 s3, 4
    s_cbranch_scc1 k2_a2l""")
    stamp(a, 0, kid=1)
    a("""s_and_b32 s20, s3, 1           ; mi
    s_lshr_b32 s21, s3, 1          ; ni
    v_and_b32 v3, 31, v1
    v_lshrrev_b32 v7, 5, v1        ; h
    v_bfe_u32 v9, v3, 1, 3
    v_xor_b32 v9, v9, v7
    s_lshl_b32 s22, s20, 13
    v_lshl_add_u32 v11, v3, 7, s22 ; A row*128""")
    for ks in range(4):
        a(f"v_xor_b32 v13, {2*ks}, v9")
        a(f"v_lshl_add_u32 v{208+ks}, v13, 4, v11")
    a("""v_lshlrev_b32 v6, 11, v7       ; 8h*256
    v_bfe_u32 v8, v1, 2, 2         ; r
    v_lshl_add_u32 v6, v8, 8, v6
    v_lshlrev_b32 v8, 2, v8        ; 4r
    v_bfe_u32 v9, v1, 4, 1
    v_lshlrev_b32 v9, 1, v9
    v_bfe_u32 v10, v1, 1, 1
    v_add_u32 v9, v9, v10
    s_lshl_b32 s22, s21, 3
    v_add_u32 v9, s22, v9
    v_xor_b32 v9, v9, v8
    v_lshl_add_u32 v6, v9, 4, v6
    v_and_b32 v9, 1, v1
    v_lshl_add_u32 v6, v9, 3, v6
    v_add_u32 v212, 16384, v6
    v_xor_b32 v213, 64, v212""")
    for r in list(range(16, 80)) + list(range(144, 208)):
        a(f"v_mov_b32 v{r}, 0")
    a("s_mov_b32 s10, 0\ns_mov_b32 s11, 8")
    def mm(prv, ks, i):
        pa = prv + 16*ks
        tm, tn = i & 1, i >> 1
        acc = 16 + 16*(tm + 2*tn)
        a(f"v_mfma_f32_32x32x16_bf16 v[{acc}:{acc+15}], v[{pa+4*tm}:{pa+4*tm+3}], v[{pa+8+4*tn}:{pa+8+4*tn+3}], v[{acc}:{acc+15}]")
    a.label("a2_cloop")
    for par in range(2):
        cur = 80 + 64*par; prv = 80 + 64*(1-par)
        for j in range(6): a(f"v_add_u32 v{216+j}, s10, v{208+j}")
        a(f"s_add_u32 s10, s10, {SLA2}\ns_cmp_ge_u32 s10, {DA2*SLA2}\ns_cselect_b32 s10, 0, s10")
        a("s_barrier")
        for ks in range(4):
            ra = cur + 16*ks
            a(f"ds_read_b128 v[{ra}:{ra+3}], v{216+ks}")
            a(f"ds_read_b128 v[{ra+4}:{ra+7}], v{216+ks} offset:4096")
            mm(prv, ks, 0)
            a(f"ds_read_b64_tr_b16 v[{ra+8}:{ra+9}], v220 offset:{ks*4096}")
            a(f"ds_read_b64_tr_b16 v[{ra+10}:{ra+11}], v220 offset:{ks*4096+1024}")
            mm(prv, ks, 1)
            a(f"ds_read_b64_tr_b16 v[{ra+12}:{ra+13}], v221 offset:{ks*4096}")
            a(f"ds_read_b64_tr_b16 v[{ra+14}:{ra+15}], v221 offset:{ks*4096+1024}")
            mm(prv, ks, 2)
            mm(prv, ks, 3)
        a("s_waitcnt lgkmcnt(0)")
    a("s_sub_u32 s11, s11, 1\ns_cmp_lg_u32 s11, 0\ns_cbranch_scc1 a2_cloop")
    for ks in range(4):
        for i in range(4): mm(144, ks, i)
    stamp(a, 1, kid=1)
    srd(a, 24, 16, 4*MB, WS_Y)
    a("""s_lshl_b32 s22, s13, 2
    s_lshl_b32 s23, s21, 1
    s_add_u32 s22, s22, s23
    s_lshl_b32 s22, s22, 4
    s_lshl_b32 s23, s12, 2
    s_add_u32 s22, s22, s23
    s_lshl_b32 s23, s20, 1
    s_add_u32 s22, s22, s23
    s_lshl_b32 s22, s22, 12
    v_lshlrev_b32 v6, 4, v1
    s_nop 7""")
    for i in range(4):
        tm, tn = i & 1, i >> 1
        a(f"s_add_u32 s23, s22, {(tn*16+tm)*4096}")
        for q in range(4):
            r = 16 + 16*i + 4*q
            a(f"buffer_store_dwordx4 v[{r}:{r+3}], v6, s[24:27], s23 offen offset:{1024*q}")
    if gen_kk.STAMPS: a("s_waitcnt vmcnt(0)")
    stamp(a, 2, kid=1)
    a("s_endpgm")
    a.label("k2_a2l")
    srd(a, 32, 16, 4*MB, WS_HT)
    a("""s_and_b32 s20, s3, 1           ; half
    s_bitcmp1_b32 s3, 1
    s_cbranch_scc1 k2_a2lb
    s_mov_b32 s4, s52
    s_mov_b32 s5, s53
    s_mov_b32 s6, 524288
    s_mov_b32 s7, 0x00020000
    v_lshrrev_b32 v6, 3, v1
    v_lshrrev_b32 v7, 4, v1
    v_and_b32 v8, 7, v1
    v_xor_b32 v7, v7, v8
    v_xor_b32 v8, 4, v7
    v_lshlrev_b32 v6, 10, v6
    v_lshl_add_u32 v7, v7, 4, v6
    v_lshl_add_u32 v8, v8, 4, v6
    v_add_u32 v8, 7168, v8
    s_lshl_b32 s22, s12, 17
    s_lshl_b32 s23, s20, 16
    s_add_u32 s22, s22, s23
    v_add_u32 v10, s22, v7
    v_add_u32 v11, s22, v8
    v_add_u32 v12, 14336, v10
    v_add_u32 v13, 14336, v11
    v_add_u32 v14, 32768, v10
    v_add_u32 v15, 32768, v11
    v_add_u32 v16, 32768, v12
    v_add_u32 v17, 32768, v13
    s_movk_i32 s9, 128
    s_movk_i32 s36, 1024
    s_lshl_b32 s10, s20, 13
    s_branch k2_a2lgo""")
    a.label("k2_a2lb")
    a("""s_mov_b32 s4, s32
    s_mov_b32 s5, s33
    s_mov_b32 s6, s34
    s_mov_b32 s7, 0x00020000
    v_lshrrev_b32 v6, 4, v1        ; row4
    v_lshlrev_b32 v7, 2, v6
    v_and_b32 v8, 15, v1
    v_xor_b32 v7, v7, v8
    v_lshlrev_b32 v6, 12, v6
    v_lshl_add_u32 v7, v7, 4, v6
    s_lshl_b32 s22, s13, 8
    s_lshl_b32 s23, s20, 17
    s_add_u32 s22, s22, s23
    v_add_u32 v10, s22, v7
    v_add_u32 v11, 15360, v10
    v_add_u32 v12, 15360, v11
    v_add_u32 v13, 15360, v12
    v_add_u32 v14, 65536, v10
    v_add_u32 v15, 65536, v11
    v_add_u32 v16, 65536, v12
    v_add_u32 v17, 65536, v13
    s_mov_b32 s9, 262144
    s_mov_b32 s36, -1
    s_lshl_b32 s10, s20, 13
    s_add_u32 s10, s10, 16384""")
    a.label("k2_a2lgo")
    a(f"s_mov_b32 s8, 0\ns_mov_b32 s14, s10\ns_add_u32 s15, s10, {DA2*SLA2}")
    def issue():
        a(f"""s_mov_b32 m0, s10
        s_add_u32 s38, s10, 4096
        buffer_load_dwordx4 v10, s[4:7], s8 offen lds
        buffer_load_dwordx4 v11, s[4:7], s8 offen offset:1024 lds
        s_add_u32 s10, s10, {SLA2}
        buffer_load_dwordx4 v12, s[4:7], s8 offen offset:2048 lds
        s_cmp_ge_u32 s10, s15
        buffer_load_dwordx4 v13, s[4:7], s8 offen offset:3072 lds
        s_mov_b32 m0, s38
        s_cselect_b32 s10, s14, s10
        buffer_load_dwordx4 v14, s[4:7], s8 offen lds
        buffer_load_dwordx4 v15, s[4:7], s8 offen offset:1024 lds
        buffer_load_dwordx4 v16, s[4:7], s8 offen offset:2048 lds
        buffer_load_dwordx4 v17, s[4:7], s8 offen offset:3072 lds
        s_add_u32 s8, s8, s9
        s_cmp_eq_u32 s8, s36
        s_cselect_b32 s4, s54, s4
        s_cselect_b32 s5, s55, s5
        s_cselect_b32 s8, 0, s8""")
    a(f"s_mov_b32 s11, {DA2-1}")
    a.label("a2_lpro"); issue()
    a("s_sub_u32 s11, s11, 1\ns_cmp_lg_u32 s11, 0\ns_cbranch_scc1 a2_lpro")
    a(f"s_mov_b32 s11, {16-(DA2-1)}")
    a.label("a2_lloop")
    a(f"s_waitcnt vmcnt({8*(DA2-2)})\ns_barrier"); issue()
    a("s_sub_u32 s11, s11, 1\ns_cmp_lg_u32 s11, 0\ns_cbranch_scc1 a2_lloop")
    for t in range(DA2-1):
        a(f"s_waitcnt vmcnt({8*(DA2-2-t)})\ns_barrier")
    a.label("k2_end")
    a("s_endpgm")

def gen_k3(a, name):
    kernel_head(a, name)
    a(f"""s_cmp_ge_u32 s2, 256
    s_cbranch_scc1 k3_end
    s_load_dwordx2 s[16:17], s[0:1], {KA['ws']}
    s_load_dwordx4 s[48:51], s[0:1], {KA['w2']}    ; w2, b2
    s_load_dwordx2 s[52:53], s[0:1], {KA['x']}
    s_load_dwordx2 s[54:55], s[0:1], {KA['out']}
    v_lshrrev_b32 v2, 6, v0
    v_and_b32 v1, 63, v0
    v_readfirstlane_b32 s3, v2
    s_and_b32 s20, s2, 7
    s_lshr_b32 s21, s2, 3
    s_and_b32 s12, s20, 1
    s_lshl_b32 s12, s12, 2
    s_and_b32 s22, s21, 3
    s_add_u32 s12, s12, s22        ; d tile
    s_lshr_b32 s13, s20, 1
    s_lshl_b32 s13, s13, 3
    s_lshr_b32 s22, s21, 2
    s_add_u32 s13, s13, s22        ; s tile
    s_lshl_b32 s12, s12, 7
    s_lshl_b32 s13, s13, 7
    s_waitcnt lgkmcnt(0)""")
    srd(a, 32, 16, 1376*1024, WS_UT)
    srd(a, 36, 48, 1376*4096)
    a("s_cmp_ge_u32 s3, 4")
    a("s_cbranch_scc1 k3_loader")
    stamp(a, 0, kid=2)
    srd(a, 24, 54, 4*MB)
    srd(a, 28, 50, 4096)
    srd(a, 56, 52, 2*MB)
    srd(a, 60, 16, 2*MB, WS_XD)
    srd(a, 64, 16, 4*MB, WS_Y)
    a(f"""s_lshr_b32 s21, s3, 1          ; ni
    s_and_b32 s20, s3, 1           ; mi
    v_and_b32 v6, 31, v1
    s_lshl_b32 s22, s21, 6
    s_add_u32 s22, s22, s13            ; s*2 base
    v_lshl_add_u32 v7, v6, 1, s22      ; s*2
    buffer_load_ushort v100, v7, s[28:31], 0 offen
    v_lshlrev_b32 v101, 9, v7          ; s*1024
    v_lshrrev_b32 v10, 5, v1
    v_lshlrev_b32 v10, 3, v10          ; 4h*2
    s_lshl_b32 s23, s20, 6
    s_add_u32 s23, s23, s12
    v_add3_u32 v101, v101, v10, s23
    v_lshlrev_b32 v102, 1, v101
    s_lshr_b32 s22, s22, 6             ; st32
    s_lshl_b32 s22, s22, 4
    s_lshr_b32 s23, s23, 6             ; dt32
    s_add_u32 s22, s22, s23
    s_lshl_b32 s22, s22, 12
    v_lshlrev_b32 v6, 4, v1""")
    for q in range(4):
        a(f"buffer_load_dwordx4 v[{104+4*q}:{107+4*q}], v6, s[64:67], s22 offen offset:{1024*q}")
        a(f"buffer_load_dwordx2 v[{120+2*q}:{121+2*q}], v101, s[56:59], 0 offen offset:{16*q}")
        a(f"buffer_load_dwordx2 v[{128+2*q}:{129+2*q}], v101, s[60:63], 0 offen offset:{16*q}")
    kk_consumer(a, 22, DKK, "b2")
    stamp(a, 1, kid=2)
    a(f"""s_mov_b32 s22, {f2u(-math.log2(math.e))}
    s_waitcnt vmcnt(0)
    v_lshlrev_b32 v8, 16, v100
    s_nop 7""")
    for q in range(4):
        r = 16 + 4*q
        y = 104 + 4*q
        round_bf16_pair(a, r, r+1, 12); round_bf16_pair(a, r+2, r+3, 13)
        for j in range(4): a(f"v_add_f32 v{r+j}, v{r+j}, v8")
        round_bf16_pair(a, r, r+1, 12); round_bf16_pair(a, r+2, r+3, 13)
        for j in range(4): a(f"v_mul_f32 v{32+j}, s22, v{r+j}")
        for j in range(4): a(f"v_exp_f32 v{32+j}, v{32+j}")
        for j in range(2):
            a(f"v_lshlrev_b32 v36, 16, v{128+2*q+j}")
            a(f"v_and_b32 v37, 0xffff0000, v{128+2*q+j}")
            a(f"v_add_f32 v{y+2*j}, v{y+2*j}, v36")
            a(f"v_add_f32 v{y+2*j+1}, v{y+2*j+1}, v37")
        for j in range(4): a(f"v_add_f32 v{32+j}, 1.0, v{32+j}")
        for j in range(4): a(f"v_rcp_f32 v{32+j}, v{32+j}")
        for j in range(2):
            a(f"v_lshlrev_b32 v{36+2*j}, 16, v{120+2*q+j}")
            a(f"v_and_b32 v{37+2*j}, 0xffff0000, v{120+2*q+j}")
        for j in range(4): a(f"v_mul_f32 v{32+j}, v{32+j}, v{r+j}")
        round_bf16_pair(a, 32, 33, 12); round_bf16_pair(a, 34, 35, 13)
        for j in range(4): a(f"v_mul_f32 v{y+j}, v{y+j}, v{32+j}")
        for j in range(4): a(f"v_add_f32 v{y+j}, v{y+j}, v{36+j}")
        a(f"buffer_store_dwordx4 v[{y}:{y+3}], v102, s[24:27], 0 offen offset:{32*q}")
    if gen_kk.STAMPS: a("s_waitcnt vmcnt(0)")
    stamp(a, 2, kid=2)
    a("s_endpgm")
    a.label("k3_loader")
    kk_loader_setup(a, 4096)
    kk_loader(a, 22, DKK, "b2")
    a.label("k3_end")
    a("s_endpgm")
```

```python
from gen_common import *

STAMPS = False

def stamp(a, idx, wsptr=16, kid=0):
    if not STAMPS: return
    a(f"""s_memrealtime s[40:41]
    s_add_u32 s44, s{wsptr}, {WS_STAMP + kid*65536}
    s_addc_u32 s45, s{wsptr+1}, 0
    s_mov_b32 s46, 65536
    s_mov_b32 s47, 0x00020000
    s_lshl_b32 s42, s2, 7
    s_add_u32 s42, s42, {idx*8}
    s_waitcnt lgkmcnt(0)
    v_mov_b32 v250, s40
    v_mov_b32 v251, s41
    v_mov_b32 v252, s42
    s_mov_b64 s[42:43], exec
    s_mov_b64 exec, 1
    buffer_store_dwordx2 v[250:251], v252, s[44:47], 0 offen
    s_mov_b64 exec, s[42:43]""")

def kk_loader(a, nst, D, tag, cachemod=""):
    SL = 16384
    a("s_mov_b32 s8, 0")
    a("s_mov_b32 s14, s10")
    a(f"s_add_u32 s15, s10, {D*SL}")
    def issue():
        a("s_mov_b32 m0, s10")
        a(f"s_add_u32 s10, s10, {SL}")
        a(f"buffer_load_dwordx4 v2, s[4:7], s8 offen{cachemod} lds")
        a(f"buffer_load_dwordx4 v3, s[4:7], s8 offen offset:1024{cachemod} lds")
        a("s_cmp_ge_u32 s10, s15")
        a(f"buffer_load_dwordx4 v4, s[4:7], s8 offen offset:2048{cachemod} lds")
        a("s_cselect_b32 s10, s14, s10")
        a(f"buffer_load_dwordx4 v5, s[4:7], s8 offen offset:3072{cachemod} lds")
        a("s_add_u32 s8, s8, s9")
    a(f"s_mov_b32 s11, {D-1}")
    a.label(f"{tag}_lpro")
    issue()
    a("s_sub_u32 s11, s11, 1")
    a("s_cmp_lg_u32 s11, 0")
    a(f"s_cbranch_scc1 {tag}_lpro")
    a(f"s_mov_b32 s11, {nst-(D-1)}")
    a.label(f"{tag}_lloop")
    a(f"s_waitcnt vmcnt({4*(D-2)})")
    a("s_barrier")
    issue()
    a("s_sub_u32 s11, s11, 1")
    a("s_cmp_lg_u32 s11, 0")
    a(f"s_cbranch_scc1 {tag}_lloop")
    for t in range(D-1):
        a(f"s_waitcnt vmcnt({4*(D-2-t)})")
        a("s_barrier")

def kk_loader_setup(a, pitchB):
    a(f"""s_and_b32 s20, s3, 1            ; half
    s_bitcmp1_b32 s3, 1
    s_cselect_b32 s4, s36, s32
    s_cselect_b32 s5, s37, s33
    s_cselect_b32 s6, s38, s34
    s_mov_b32 s7, 0x00020000
    s_movk_i32 s21, 1024
    s_cselect_b32 s21, {pitchB}, s21      ; pitch
    s_cselect_b32 s22, s13, s12
    s_cselect_b32 s10, 8192, 0
    s_lshl_b32 s23, s20, 12
    s_add_u32 s10, s10, s23
    s_lshl_b32 s9, s21, 6
    s_lshl_b32 s23, s20, 5                ; 32*half
    v_lshrrev_b32 v6, 3, v1
    v_add_u32 v6, s23, v6                 ; row
    v_mul_lo_u32 v6, v6, s21
    v_lshrrev_b32 v7, 2, v1
    v_and_b32 v7, 4, v7
    v_and_b32 v8, 7, v1
    v_xor_b32 v7, v7, v8
    v_lshlrev_b32 v7, 4, v7
    v_add3_u32 v2, v6, v7, s22
    s_lshl_b32 s23, s21, 3
    s_sub_u32 s23, s23, 1024
    v_add_u32 v3, s23, v2
    v_add_u32 v4, s23, v3
    v_add_u32 v5, s23, v4""")

def kk_consumer(a, nst, D, tag):
    SL = 16384
    a(f"""s_and_b32 s20, s3, 1            ; mi
    s_lshr_b32 s21, s3, 1                ; ni
    v_lshrrev_b32 v6, 5, v1               ; h
    v_lshlrev_b32 v6, 10, v6              ; 8h*128
    v_bfe_u32 v7, v1, 2, 2                ; r
    v_lshl_add_u32 v6, v7, 7, v6          ; + r*128
    v_bfe_u32 v8, v1, 4, 1                ; g
    v_lshlrev_b32 v8, 1, v8
    v_bfe_u32 v9, v1, 1, 1                ; c4>>1
    v_add_u32 v8, v8, v9                  ; 2g + (c4>>1)
    v_bfe_u32 v9, v1, 3, 1                ; (r>>1)&1
    v_lshlrev_b32 v9, 2, v9
    v_xor_b32 v8, v8, v9
    v_lshl_add_u32 v6, v8, 4, v6
    v_and_b32 v9, 1, v1
    v_lshl_add_u32 v6, v9, 3, v6
    s_lshl_b32 s20, s20, 6
    s_lshl_b32 s21, s21, 6
    v_xor_b32 v2, s20, v6                 ; A addr
    v_xor_b32 v3, s21, v6
    v_add_u32 v3, 8192, v3                ; B addr
    s_mov_b32 s10, 0""")
    for r in list(range(16, 32)) + list(range(64, 96)):
        a(f"v_mov_b32 v{r}, 0")
    a(f"s_mov_b32 s11, {nst//2}")
    a.label(f"{tag}_cloop")
    for par in range(2):
        cur = 32 + 32*par
        prv = 32 + 32*(1-par)
        a("v_add_u32 v4, s10, v2")
        a("v_add_u32 v5, s10, v3")
        a(f"s_add_u32 s10, s10, {SL}")
        a(f"s_cmp_ge_u32 s10, {D*SL}")
        a("s_cselect_b32 s10, 0, s10")
        a("s_barrier")
        for ks in range(4):
            ra = cur + 8*ks
            a(f"ds_read_b64_tr_b16 v[{ra}:{ra+1}], v4 offset:{ks*2048}")
            a(f"ds_read_b64_tr_b16 v[{ra+2}:{ra+3}], v4 offset:{ks*2048+512}")
            a(f"ds_read_b64_tr_b16 v[{ra+4}:{ra+5}], v5 offset:{ks*2048}")
            a(f"ds_read_b64_tr_b16 v[{ra+6}:{ra+7}], v5 offset:{ks*2048+512}")
            pa = prv + 8*ks
            a(f"v_mfma_f32_32x32x16_bf16 v[16:31], v[{pa}:{pa+3}], v[{pa+4}:{pa+7}], v[16:31]")
        a("s_waitcnt lgkmcnt(0)")
    a("s_sub_u32 s11, s11, 1")
    a("s_cmp_lg_u32 s11, 0")
    a(f"s_cbranch_scc1 {tag}_cloop")
    for ks in range(4):
        pa = 64 + 8*ks
        a(f"v_mfma_f32_32x32x16_bf16 v[16:31], v[{pa}:{pa+3}], v[{pa+4}:{pa+7}], v[16:31]")

def round_bf16_pair(a, x0, x1, t):
    a(f"v_cvt_pk_bf16_f32 v{t}, v{x0}, v{x1}")
    a(f"v_lshlrev_b32 v{x0}, 16, v{t}")
    a(f"v_and_b32 v{x1}, 0xffff0000, v{t}")
```

```python
import sys
from gen_common import *
import gen_kk, gen_k1, gen_k23
gen_kk.STAMPS = "stamps" in sys.argv
out = sys.argv[1]
a = Asm()
a.raw(f"; @launch kernel=k1_kernel grid=(256,1,1) block=(512,1,1) lds={gen_k1.K1_LDS}")
a.raw(f"; @launch kernel=k2_kernel grid=(256,1,1) block=(512,1,1) lds={gen_k23.K2_LDS}")
a.raw(f"; @launch kernel=k3_kernel grid=(256,1,1) block=(512,1,1) lds={gen_k23.K3_LDS}")
a.raw('.amdgcn_target "amdgcn-amd-amdhsa--gfx950"')
a.raw(".text")
gen_k1.gen_k1(a, "k1_kernel")
gen_k23.gen_k2(a, "k2_kernel")
gen_k23.gen_k3(a, "k3_kernel")
a.raw('.section .rodata,"a"')
for k in ("k1_kernel", "k2_kernel", "k3_kernel"): kernel_desc(a, k, 256)
open(out, "w").write(a.text())
```
